```python
import torch

def _softmax(x, axis=-1):
    return torch.softmax(x, dim=axis)

def _gelu(x):
    return torch.nn.functional.gelu(x, approximate='tanh')

def _silu(x):
    return torch.nn.functional.silu(x)

def _sigmoid(x):
    return torch.sigmoid(x)

def _layernorm(x, axis=-1, eps=1e-05):
    m = x.mean(dim=axis, keepdim=True)
    v = x.var(dim=axis, keepdim=True, unbiased=False)
    return (x - m) / torch.sqrt(v + eps)

def _scatter_add(tgt, idx, src, axis=0):
    return tgt.clone().index_add_(axis, idx, src)

def _segment_sum(src, seg, n):
    out = torch.zeros((n,) + src.shape[1:], dtype=src.dtype)
    return out.index_add_(0, seg, src)

def _pad(x, pw):
    flat = tuple((v for pair in reversed(pw) for v in pair))
    return torch.nn.functional.pad(x, flat)
kernel_name = 'gather_scatter__molecular_angular_painn__graph'

def setup_inputs():

    _w = lambda a: (lambda t: t.to(torch.bfloat16) if t.is_floating_point() else t)(torch.as_tensor(a))
    N, deg, D = (25000, 32, 64)
    n_rbf = max(0, 4)
    E = N * deg
    cutoff = 5.0
    freqs = (torch.arange(1, n_rbf + 1) * torch.pi / cutoff).to(float)
    return {'sv': _w((lambda *s: torch.randn(*s, dtype=torch.bfloat16) * 0.4)(N, 4, D) * 0.3), 'pos': _w((lambda *s: torch.randn(*s, dtype=torch.bfloat16) * 3.2)(N, 3) * 1.2), 'src': _w((lambda lo, hi, *s: torch.randint(lo, hi, s))(0, N, E).to(torch.int64)), 'dst': _w((lambda lo, hi, *s: torch.randint(lo, hi, s))(0, N, E).to(torch.int64)), 'freqs': _w(freqs), 'w_phi1': _w((lambda *s: torch.randn(*s, dtype=torch.bfloat16) * 3.2)(D, D) / D ** 0.5), 'w_phi2': _w((lambda *s: torch.randn(*s, dtype=torch.bfloat16) * 3.2)(D, 3 * D) / D ** 0.5), 'w_rbf': _w((lambda *s: torch.randn(*s, dtype=torch.bfloat16) * 3.2)(n_rbf, 3 * D) / n_rbf ** 0.5)}

def reference(sv, pos, src, dst, freqs, w_phi1, w_phi2, w_rbf):
    N, _, D = sv.shape
    E = src.shape[0]
    PI, cutoff = (3.141592653589793, 5.0)
    s, v = (sv[:, 0, :].clone(), sv[:, 1:, :].clone())
    r_vec = pos[src] - pos[dst]
    d = torch.sqrt((r_vec * r_vec).sum(-1) + 1e-08)
    r_hat = r_vec / d[:, None]
    rbf = torch.sin(d[:, None] * freqs[None, :]) / d[:, None]
    fcut = 0.5 * (torch.cos(PI * d / cutoff) + 1.0)
    fcut = torch.where(d < cutoff, fcut, 0.0 * d)
    Wf = rbf @ w_rbf * fcut[:, None]
    phi = (_silu(s @ w_phi1) @ w_phi2)[src]
    m = phi * Wf
    m_s, m_vv, m_vr = (m[:, :D].clone(), m[:, D:2 * D].clone(), m[:, 2 * D:].clone())
    ds = _segment_sum(m_s, dst, N)
    dv_e = m_vv[:, None, :] * v[src] + m_vr[:, None, :] * r_hat[:, :, None]
    dv = _segment_sum(dv_e.reshape(E, 3 * D), dst, N).reshape(N, 3, D)
    return sv + torch.concatenate([ds[:, None, :], dv], axis=1)
```

```python
import re

TRANS = ("v_exp_f32", "v_log_f32", "v_rcp_f32", "v_rsq_f32", "v_sqrt_f32", "v_sin_f32", "v_cos_f32")
NOSCC = ("s_mov_b32", "s_mov_b64", "s_mul_i32", "s_mul_hi_u32", "s_movk_i32", "s_getreg_b32", "s_cselect_b32",
         "s_cselect_b64", "s_bitset1_b32", "s_bitset0_b32", "s_setprio", "s_memtime", "s_memrealtime", "s_bfm_b64", "s_bfm_b32")

def regs_of(tok):
    tok = tok.strip()
    neg = tok.lstrip("-")
    if neg.startswith("abs(") or neg.startswith("|"):
        neg = neg.replace("abs(", "").replace(")", "").replace("|", "")
    tok = neg
    m = re.fullmatch(r"([vsa])(\d+)", tok)
    if m: return [tok]
    m = re.fullmatch(r"([vsa])\[(\d+):(\d+)\]", tok)
    if m: return [f"{m.group(1)}{i}" for i in range(int(m.group(2)), int(m.group(3)) + 1)]
    if tok in ("vcc", "vcc_lo", "vcc_hi"): return ["vcc"]
    if tok in ("exec", "exec_lo", "exec_hi"): return ["exec"]
    if tok == "m0": return ["m0"]
    return []

def split_ops(s):
    out, depth, cur = [], 0, ""
    for ch in s:
        if ch in "[(": depth += 1
        if ch in "])": depth -= 1
        if ch == "," and depth == 0: out.append(cur.strip()); cur = ""
        else: cur += ch
    if cur.strip(): out.append(cur.strip())
    return out

class Ins:
    def __init__(self, text, rd=(), wr=(), lat=None):
        self.text = text.strip()
        self.xrd, self.xwr = list(rd), list(wr)
        self.lat = lat
        self.parse()
    def __repr__(self): return self.text
    def parse(self):
        t = self.text
        self.defs, self.uses = set(), set()
        self.kind = None; self.passes = 0; self.A = self.B = self.C = self.D = []
        self.dpp = False; self.isload = False; self.wide_store = []
        if t.endswith(":"):
            self.kind = "label"; self.mn = t[:-1]; return
        if t.startswith(";") or t.startswith(".") or t == "":
            self.kind = "raw"; self.mn = ""; return
        parts = t.split(None, 1)
        mn = self.mn = parts[0]
        rest = parts[1] if len(parts) > 1 else ""
        ops = split_ops(rest)
        mods = ""
        if ops:
            sp = ops[-1].split(None, 1)
            if len(sp) > 1 and not ops[-1].startswith(("vmcnt", "lgkmcnt")):
                ops[-1] = sp[0]; mods = sp[1]
        self.ops, self.mods = ops, mods
        R = [regs_of(o) for o in ops]
        flat = lambda xs: set(r for x in xs for r in x)
        if mn == "s_waitcnt": self.kind = "wait"
        elif mn == "s_nop": self.kind = "nop"; self.n = int(ops[0], 0) + 1
        elif mn == "s_barrier": self.kind = "barrier"
        elif mn == "s_endpgm": self.kind = "end"
        elif mn.startswith("s_cbranch") or mn == "s_branch":
            self.kind = "branch"; self.target = ops[0]
            if "scc" in mn: self.uses = {"scc"}
            elif "vcc" in mn: self.uses = {"vcc"}
            elif "exec" in mn: self.uses = {"exec"}
        elif mn.startswith("s_load") or mn in ("s_memtime", "s_memrealtime"):
            self.kind = "smem"; self.defs = flat(R[:1]); self.uses = flat(R[1:])
        elif mn.startswith("s_"):
            self.kind = "salu"
            if mn.startswith("s_cmp") or mn.startswith("s_bitcmp"):
                self.defs = {"scc"}; self.uses = flat(R)
            elif mn in ("s_setprio", "s_sleep"): pass
            else:
                self.defs = flat(R[:1]); self.uses = flat(R[1:])
                if mn not in NOSCC: self.defs.add("scc")
                if mn.startswith("s_cselect") or mn in ("s_addc_u32", "s_subb_u32"): self.uses.add("scc")
                if "saveexec" in mn: self.defs.add("exec"); self.uses.add("exec")
                if mn in ("s_bitset1_b32", "s_bitset0_b32"): self.uses |= flat(R[:1])
        elif mn.startswith("v_mfma"):
            self.kind = "mfma"
            self.D, self.A, self.B, self.C = R[0], R[1], R[2], R[3]
            self.passes = 2 if "4x4x4" in mn else (8 if "32x32" in mn else 4)
            self.defs = set(self.D); self.uses = set(self.A) | set(self.B) | set(self.C) | {"exec"}
        elif mn.startswith("v_"):
            base = mn.replace("_e32", "").replace("_e64", "").replace("_dpp", "").replace("_sdwa", "")
            self.kind = "trans" if base in TRANS else "valu"
            self.dpp = "_dpp" in mn
            self.defs = flat(R[:1]); self.uses = flat(R[1:]) | {"exec"}
            if base.startswith(("v_fmac", "v_dot2c", "v_writelane")): self.uses |= flat(R[:1])
            if base.startswith("v_permlane"): self.defs |= flat(R[1:2]); self.uses |= flat(R[:1])
            if base.startswith(("v_add_co", "v_sub_co", "v_addc_co")): self.defs |= flat(R[1:2])
        elif mn.startswith("ds_"):
            self.kind = "ds"
            if mn.startswith("ds_read") or "_rtn" in mn or "permute" in mn or "swizzle" in mn:
                self.defs = flat(R[:1]); self.uses = flat(R[1:]); self.isload = True
            else:
                self.uses = flat(R)
            self.uses.add("exec")
            if not self.xrd and not self.xwr:
                if mn.startswith("ds_read"): self.xrd = ["@lds"]
                elif "permute" in mn or "swizzle" in mn: pass
                else: self.xwr = ["@lds"]; self.xrd = ["@lds"]
        elif mn.startswith("buffer_") or mn.startswith("global_"):
            self.kind = "vmem"
            islds = re.search(r"\blds\b", mods) is not None
            if "load" in mn and not islds:
                self.defs = flat(R[:1]); self.uses = flat(R[1:]); self.isload = True
            elif islds:
                self.uses = flat(R) | {"m0"}; self.isload = True; self.isdma = True
            elif "atomic" in mn and "sc0" in mods:
                self.defs = flat(R[:1]); self.uses = flat(R); self.isload = True
            else:
                self.uses = flat(R)
                if "x4" in mn or "x3" in mn: self.wide_store = R[0]
            self.uses.add("exec")
        else:
            raise ValueError("unknown instr " + t)
        if self.kind in ("ds", "vmem"):
            self.defs |= set(self.xwr); self.uses |= set(self.xrd)
    @property
    def isvalu(self): return self.kind in ("valu", "trans")
    def issue_cost(self):
        if self.kind == "mfma": return 8 if ("x32_" in self.mn or "32x32" in self.mn) else 4
        if self.kind == "trans": return 8
        return 4
    def latency(self):
        if self.lat is not None: return self.lat
        if self.kind == "ds": return 110 if self.isload else 8
        if self.kind == "vmem": return 700
        if self.kind == "mfma": return self.passes * 4 + 20
        if self.kind == "trans": return 12
        return 4

def need_states(p, c):
    n = 0
    if p.isvalu:
        vd = {r for r in p.defs if r[0] == "v" and r != "vcc"}
        sd = {r for r in p.defs if r[0] == "s" and r != "scc" or r == "vcc"}
        if c.kind == "mfma" and vd & c.uses: n = max(n, 2)
        if c.isvalu:
            if c.dpp and vd & c.uses: n = max(n, 2)
            if c.mn.startswith("v_permlane") and vd & c.uses: n = max(n, 2)
            if c.mn.startswith(("v_readfirstlane", "v_readlane")) and vd & c.uses: n = max(n, 1)
            if p.kind == "trans" and c.kind != "trans" and vd & c.uses: n = max(n, 1)
            if sd & c.uses: n = max(n, 4 if c.mn.startswith(("v_readlane", "v_writelane")) else 2)
        if c.kind == "vmem" and sd & c.uses: n = max(n, 5)
        if c.kind in ("salu", "smem") and sd & c.uses: n = max(n, 1)
    if p.kind == "mfma":
        D = set(p.D); big = {2: 5, 4: 8, 8: 12}[p.passes]
        if c.kind == "mfma":
            if D & (set(c.A) | set(c.B)): n = max(n, big)
            if D & set(c.C):
                if c.C == p.D and c.passes == p.passes: n = max(n, 2 if p.passes == 2 else 0)
                else: n = max(n, {2: 4, 4: 6, 8: 10}[p.passes])
            elif D & set(c.D):
                n = max(n, {2: 4, 4: 6, 8: 10}[p.passes])
        elif c.kind in ("valu", "trans", "ds", "vmem"):
            if D & (c.uses | c.defs): n = max(n, big)
        if c.isvalu and set(p.C) & c.defs: n = max(n, {2: 1, 4: 3, 8: 7}[p.passes])
    if p.kind == "salu" and "m0" in p.defs and c.kind == "vmem" and "m0" in c.uses: n = max(n, 1)
    if p.wide_store and (c.isvalu or c.kind == "mfma") and set(p.wide_store) & c.defs: n = max(n, 2)
    if p.wide_store and c.kind in ("ds", "vmem") and set(p.wide_store) & c.defs: n = max(n, 1)
    return n

FENCE = ("label", "branch", "barrier", "end", "wait", "raw", "nop", "smem")

def states(i): return i.n if i.kind == "nop" else (0 if i.kind in ("label", "raw") else 1)

def schedule(ops, prev_tail=()):
    n = len(ops)
    preds = [dict() for _ in range(n)]
    lastw, readers = {}, {}
    for i, o in enumerate(ops):
        for r in o.uses:
            if r in lastw: preds[i][lastw[r]] = max(preds[i].get(lastw[r], 0), ops[lastw[r]].latency())
        for r in o.defs:
            if r in lastw:
                p = lastw[r]
                preds[i].setdefault(p, ops[p].latency() if (ops[p].isload or ops[p].kind == "mfma") else 0)
            for q in readers.get(r, ()):
                if q != i: preds[i].setdefault(q, 0)
        for r in o.uses: readers.setdefault(r, []).append(i)
        for r in o.defs: lastw[r] = i; readers[r] = []
    lastv = None
    for i, o in enumerate(ops):
        if o.kind == "vmem":
            if lastv is not None: preds[i].setdefault(lastv, 0)
            lastv = i
    succs = [[] for _ in range(n)]
    for i in range(n):
        for p in preds[i]: succs[p].append(i)
    cp = [0] * n
    for i in range(n - 1, -1, -1):
        cp[i] = ops[i].issue_cost() + max([preds[s][i] + cp[s] for s in succs[i]] + [ops[i].latency() if ops[i].isload else 0])
    done, order, tissue = [False] * n, [], [0] * n
    npred = [len(p) for p in preds]
    ready = [i for i in range(n) if npred[i] == 0]
    now, pipe_free = 0, 0
    hist = list(prev_tail)
    while ready:
        best = None
        for i in ready:
            o = ops[i]
            est = now
            for p, l in preds[i].items(): est = max(est, tissue[p] + l)
            if o.kind == "mfma": est = max(est, pipe_free)
            d, nops = 0, 0
            for h in reversed(hist[-14:]):
                k = need_states(h, o)
                if k > d: nops = max(nops, k - d)
                d += states(h)
            est = max(est, now + 4 * nops)
            key = (est - now, -cp[i], i)
            if best is None or key < best[0]: best = (key, i, est, nops)
        _, i, est, nops = best
        o = ops[i]
        ready.remove(i); done[i] = True
        tissue[i] = est; now = est + o.issue_cost()
        if o.kind == "mfma": pipe_free = est + o.passes * 4
        if nops:
            nop = Ins(f"s_nop {nops - 1}"); order.append(nop); hist.append(nop)
        order.append(o); hist.append(o)
        for s in succs[i]:
            npred[s] -= 1
            if npred[s] == 0: ready.append(s)
    assert all(done)
    return order, now

def insert_waits(seq, lq, vq):
    out = []
    for o in seq:
        if o.kind == "wait":
            m = re.search(r"vmcnt\((\d+)\)", o.text)
            if m:
                k = int(m.group(1)); del vq[:max(0, len(vq) - k)]
            m = re.search(r"lgkmcnt\((\d+)\)", o.text)
            if m:
                k = int(m.group(1)); del lq[:max(0, len(lq) - k)]
            out.append(o); continue
        touch = o.uses | o.defs
        w = []
        for name, q, cap in (("vmcnt", vq, 63), ("lgkmcnt", lq, 15)):
            idx = -1
            for j, toks in enumerate(q):
                if toks & touch:
                    hit = toks & touch
                    if o.kind == "ds" and name == "lgkmcnt" and all(t.startswith("@") for t in hit): continue
                    idx = j
            if idx >= 0:
                k = min(len(q) - 1 - idx, cap - 1)
                w.append(f"{name}({k})"); del q[:len(q) - k]
        if w: out.append(Ins("s_waitcnt " + " ".join(w)))
        out.append(o)
        if o.kind == "ds":
            lq.append(set(o.defs) if o.isload else set())
        elif o.kind == "vmem":
            vq.append(set(o.defs) if o.isload else set())
        elif o.kind == "smem":
            lq.append(set(o.defs))
    return out

class Asm:
    def __init__(self):
        self.items = []
        self.cur = None
        self.lq, self.vq = [], []
        self.report = []
    def I(self, text, **kw):
        for line in text.strip().split("\n"):
            line = line.split(";")[0].strip() if not line.strip().startswith(";") else line.strip()
            if not line: continue
            ins = Ins(line, **kw)
            if self.cur is not None and ins.kind not in FENCE: self.cur.append(ins)
            else:
                assert self.cur is None or ins.kind == "raw" or True
                if self.cur is not None and ins.kind != "raw":
                    name = self.curname; self.end(); self._emit([ins]); self.begin(name)
                elif self.cur is None: self._emit([ins])
    def _emit(self, seq):
        for ins in seq:
            if ins.kind == "label":
                left = [t for q in (self.lq + self.vq) for t in q if not t.startswith("@") and not t.startswith("done:")]
                assert not left or getattr(self, "allow_pending", False), f"pending loads at label {ins.text}: {left}"
        self.items += insert_waits(seq, self.lq, self.vq)
    def begin(self, name="region"):
        assert self.cur is None
        self.cur = []; self.curname = name
    def end(self):
        ops, self.cur = self.cur, None
        if not ops: return
        seq, t = schedule(ops, self.items[-14:])
        self.report.append((self.curname, len(ops), t))
        self._emit(seq)
    def forget(self):
        self.lq.clear(); self.vq.clear()
    def fix_hazards(self):
        changed = True
        while changed:
            changed = False
            it = self.items
            labels = {o.mn: i for i, o in enumerate(it) if o.kind == "label"}
            jumps = {}
            for i, o in enumerate(it):
                if o.kind == "branch": jumps.setdefault(labels[o.target], []).append(i)
            def need(i, c, d, depth):
                worst = 0
                stack = [(i, d)]
                seen = set()
                while stack:
                    j, dd = stack.pop()
                    if dd >= 14 or j <= 0 or (j, dd) in seen: continue
                    seen.add((j, dd))
                    p = it[j - 1]
                    if p.kind == "label":
                        for b in jumps.get(j - 1, ()): stack.append((b + 1, dd))
                        stack.append((j - 1, dd)); continue
                    if p.kind == "end" or (p.kind == "branch" and p.mn == "s_branch" and j != i and not came_by_jump(j, stack)):
                        pass
                    k = need_states(p, c)
                    if k > dd: worst = max(worst, k - dd)
                    stack.append((j - 1, dd + states(p)))
                return worst
            def came_by_jump(j, stack): return True
            for i, c in enumerate(it):
                if c.kind in ("label", "raw", "nop", "wait", "barrier", "end"): continue
                k = need(i, c, 0, 0)
                if k:
                    it.insert(i, Ins(f"s_nop {k - 1}")); changed = True; break
    def text(self):
        return "\n".join((o.text if o.kind in ("label", "raw") else "    " + o.text) for o in self.items) + "\n"
```

```python
import sys
from asmlib import Asm, Ins

N = 25000; E = 800000
TILE = 98
CHUNK = 3128
E_BASE = 0x0
O_BASE = 0x200000
O_STRIDE = 12544
H_BASE = 0x600000
W2F_BASE = 0xA00000
WF_BASE = 0xA06000
WS_BYTES = 0xB00000
THRESH = 0x41c90000
STAMP = False

def srd(a, base, lo, hi, nbytes):
    a.I(f"""s_mov_b32 s{base}, s{lo}
            s_mov_b32 s{base+1}, s{hi}
            s_mov_b32 s{base+2}, {nbytes}
            s_mov_b32 s{base+3}, 0x00020000""")

def vr(b, n=1): return f"v{b}" if n == 1 else f"v[{b}:{b+n-1}]"

def stamp(a, idx, sreg=96):
    pass

K1_REC = 150528
K1_CNT = 158720
K1_LDS = 160768

def gen_k1(a):
    a.I("""s_load_dwordx4 s[4:7], s[0:1], 0
           s_load_dwordx4 s[40:43], s[0:1], 16
           s_load_dwordx4 s[44:47], s[0:1], 32
           s_load_dwordx4 s[48:51], s[0:1], 48
           s_load_dwordx2 s[52:53], s[0:1], 80
           s_cmp_ge_u32 s2, 256
           s_cbranch_scc1 K1_end
           v_lshrrev_b32 v1, 6, v0
           v_and_b32 v2, 63, v0
           v_readfirstlane_b32 s3, v1
           v_lshlrev_b32 v3, 4, v2
           s_cmp_ge_u32 s3, 13
           s_cbranch_scc1 K1_node
           s_waitcnt lgkmcnt(0)""")
    a.forget()
    a.begin("k1_issue")
    srd(a, 8, 40, 41, E * 4); srd(a, 12, 42, 43, E * 4)
    a.I(f"""v_lshlrev_b32 v1, 4, v0
            s_mul_i32 s24, s2, {CHUNK*4}
            buffer_load_dwordx4 v[4:7], v1, s[8:11], s24 offen
            buffer_load_dwordx4 v[8:11], v1, s[12:15], s24 offen""")
    srd(a, 16, 6, 7, N * 6); srd(a, 20, 52, 53, WS_BYTES)
    a.I(f"""s_lshr_b32 s25, s2, 3
            s_mul_i32 s25, s25, 5
            s_add_u32 s25, s25, s3
            s_lshl_b32 s25, s25, 10
            s_sub_u32 s26, s25, {147*1024}
            s_cselect_b32 s25, s25, s26""")
    for k in range(11):
        a.I(f"""s_mov_b32 m0, s25
                buffer_load_dwordx4 v3, s[16:19], s25 offen lds""")
        a.I(f"""s_add_u32 s25, s25, {13*1024}
                s_sub_u32 s26, s25, {147*1024}
                s_cselect_b32 s25, s25, s26""")
    a.I(f"""v_and_b32 v12, 0x1ff, v0
            v_mov_b32 v13, 0
            v_lshlrev_b32 v12, 2, v12
            v_add_u32 v12, {K1_CNT}, v12
            ds_write_b32 v12, v13
            s_mul_i32 s27, s2, {CHUNK//4}
            s_sub_u32 s27, {E//4}, s27
            s_min_u32 s27, s27, {CHUNK//4}
            v_cmp_gt_u32 s[28:29], s27, v0
            s_cmp_ge_u32 s3, 4""")
    a.end()
    a.I("s_cbranch_scc1 K1_no12")
    a.I("""s_mov_b32 m0, s25
           s_nop 0
           buffer_load_dwordx4 v3, s[16:19], s25 offen lds""")
    a.allow_pending = True
    a.I("K1_no12:")
    a.allow_pending = False
    a.I("s_waitcnt vmcnt(11)")
    a.lq.clear(); a.vq.clear()
    a.begin("k1_addr")
    for i in range(8):
        a.I(f"""v_mul_u32_u24 v{16+i}, 6, v{4+i}
                v_and_b32 v{16+i}, -4, v{16+i}
                v_lshlrev_b32 v{24+i}, 4, v{4+i}""")
    a.I(f"""s_movk_i32 s30, -{TILE}
            s_mov_b32 s31, {K1_CNT}
            s_mov_b32 s32, {K1_REC + 4}
            s_mov_b32 s33, {THRESH}""")
    for i in range(4):
        a.I(f"""v_mul_u32_u24 v{48+i}, 5350, v{8+i}
                v_lshrrev_b32 v{48+i}, 19, v{48+i}
                v_mad_i32_i24 v{52+i}, v{48+i}, s30, v{8+i}
                v_lshl_or_b32 v{52+i}, v{4+i}, 9, v{52+i}
                v_lshl_or_b32 v{52+i}, v{48+i}, 24, v{52+i}
                v_lshl_add_u32 v{56+i}, v{48+i}, 2, s31
                v_lshl_add_u32 v{60+i}, v{48+i}, 5, s32""")
    a.end()
    a.I("""s_waitcnt lgkmcnt(0)
           s_barrier
           s_waitcnt vmcnt(0)
           s_barrier""")
    a.forget()
    a.begin("k1_filter")
    for i in range(8):
        a.I(f"ds_read2_b32 v[{32+2*i}:{33+2*i}], v{16+i} offset0:0 offset1:1")
    for i in range(4):
        regs = []
        for e in (i, 4 + i):
            d0, d1, sh = 32 + 2*e, 33 + 2*e, 24 + e
            a.I(f"""v_alignbit_b32 v{d0}, v{d1}, v{d0}, v{sh}
                    v_lshrrev_b32 v{d1}, v{sh}, v{d1}
                    v_lshlrev_b32 v{16+e}, 16, v{d0}
                    v_and_b32 v{d0}, 0xffff0000, v{d0}
                    v_lshlrev_b32 v{d1}, 16, v{d1}""")
            regs.append((16 + e, d0, d1))
        (xs, ys, zs), (xd, yd, zd) = regs
        a.I(f"""v_sub_f32 v{xs}, v{xs}, v{xd}
                v_sub_f32 v{ys}, v{ys}, v{yd}
                v_sub_f32 v{zs}, v{zs}, v{zd}
                v_mul_f32 v{xs}, v{xs}, v{xs}
                v_fmac_f32 v{xs}, v{ys}, v{ys}
                v_fmac_f32 v{xs}, v{zs}, v{zs}
                v_cmp_nlt_f32 s[{64+2*i}:{65+2*i}], s33, v{xs}
                s_and_b64 s[{64+2*i}:{65+2*i}], s[{64+2*i}:{65+2*i}], s[28:29]""")
    a.I("v_mov_b32 v12, 1")
    a.end()
    for i in range(4):
        a.I(f"""s_mov_b64 exec, s[{64+2*i}:{65+2*i}]
                ds_add_rtn_u32 v{24+i}, v{56+i}, v12""")
    a.I("s_mov_b64 s[72:73], 0")
    for i in range(4):
        a.I(f"""s_mov_b64 exec, s[{64+2*i}:{65+2*i}]
                v_cmp_lt_u32 vcc, 6, v{24+i}
                v_lshl_add_u32 v{60+i}, v{24+i}, 2, v{60+i}
                s_mov_b64 s[{64+2*i}:{65+2*i}], vcc
                s_or_b64 s[72:73], s[72:73], vcc
                s_andn2_b64 exec, exec, vcc
                ds_write_b32 v{60+i}, v{52+i}""")
    a.I("""s_mov_b64 exec, -1
           s_cmp_eq_u64 s[72:73], 0
           s_cbranch_scc1 K1_noovf""")
    a.I(f"""v_mov_b32 v13, {K1_CNT + 1024}
            s_mul_i32 s34, s2, {O_STRIDE}
            s_add_u32 s34, s34, {O_BASE}""")
    for i in range(4):
        a.I(f"""s_mov_b64 exec, s[{64+2*i}:{65+2*i}]
                s_cbranch_execz K1_ov{i}
                ds_add_rtn_u32 v14, v13, v12
                s_waitcnt lgkmcnt(0)
                v_lshlrev_b32 v14, 2, v14
                buffer_store_dword v{52+i}, v14, s[20:23], s34 offen
                K1_ov{i}:""")
    a.I("""s_mov_b64 exec, -1
           K1_noovf:
           s_waitcnt lgkmcnt(0)
           s_barrier
           s_cmp_ge_u32 s3, 8
           s_cbranch_scc1 K1_end""")
    a.forget()
    a.begin("k1_out")
    a.I(f"""v_add_u32 v4, {K1_REC}, v1
            v_lshrrev_b32 v5, 1, v0
            v_lshl_add_u32 v5, v5, 2, s31
            v_mov_b32 v6, {K1_CNT + 1024}
            ds_read_b128 v[8:11], v4
            ds_read_b32 v12, v5
            ds_read_b32 v13, v6
            v_and_b32 v7, 1, v0
            v_cmp_eq_u32 vcc, 0, v7
            s_lshl_b32 s34, s2, 13
            v_lshl_or_b32 v12, v13, 16, v12
            v_cndmask_b32 v8, v8, v12, vcc
            buffer_store_dwordx4 v[8:11], v1, s[20:23], s34 offen""")
    a.end()
    a.I("s_endpgm")
    a.I("""K1_node:
           s_waitcnt lgkmcnt(0)""")
    a.forget()
    a.begin("k1_node_issue")
    srd(a, 8, 46, 47, 64 * 64 * 2)
    srd(a, 12, 4, 5, N * 512)
    a.I(f"""s_sub_u32 s3, s3, 13
            s_lshl_b32 s24, s3, 10
            s_add_u32 m0, s24, {K1_REC}
            buffer_load_dwordx4 v3, s[8:11], s24 offen lds
            s_add_u32 s24, s24, 3072
            s_add_u32 m0, s24, {K1_REC}
            buffer_load_dwordx4 v3, s[8:11], s24 offen lds
            s_add_u32 s24, s24, 3072
            s_min_u32 s24, s24, 7168
            s_add_u32 m0, s24, {K1_REC}
            buffer_load_dwordx4 v3, s[8:11], s24 offen lds""")
    a.I(f"""s_mul_i32 s25, s2, 3
            s_add_u32 s25, s25, s3
            v_and_b32 v4, 15, v2
            v_lshrrev_b32 v5, 4, v2
            v_lshlrev_b32 v6, 9, v4
            v_lshl_add_u32 v6, v5, 4, v6
            s_lshl_b32 s26, s25, 13
            s_add_u32 s27, s26, {768*8192}
            buffer_load_dwordx4 v[8:11], v6, s[12:15], s26 offen
            buffer_load_dwordx4 v[12:15], v6, s[12:15], s26 offen offset:64
            buffer_load_dwordx4 v[16:19], v6, s[12:15], s27 offen
            buffer_load_dwordx4 v[20:23], v6, s[12:15], s27 offen offset:64
            s_add_u32 s27, s27, {768*8192}
            s_cmp_ge_u32 s25, 27""")
    a.end()
    a.I("s_cbranch_scc1 K1_no3")
    a.I("""buffer_load_dwordx4 v[24:27], v6, s[12:15], s27 offen
           buffer_load_dwordx4 v[28:31], v6, s[12:15], s27 offen offset:64""")
    a.allow_pending = True
    a.I("K1_no3:")
    a.allow_pending = False
    a.forget()
    a.I(f"s_add_u32 s54, s52, {H_BASE}\ns_addc_u32 s55, s53, 0")
    srd(a, 16, 54, 55, N * 128)
    srd(a, 20, 52, 53, WS_BYTES)
    a.I(f"""v_lshrrev_b32 v7, 2, v4
            v_and_b32 v1, 3, v2
            v_lshl_add_u32 v7, v5, 3, v7
            v_lshlrev_b32 v7, 7, v7
            v_lshl_add_u32 v7, v1, 4, v7
            v_add_u32 v7, {K1_REC}, v7
            v_lshlrev_b32 v6, 7, v4
            v_lshl_add_u32 v6, v5, 4, v6
            s_mov_b32 s30, 0xbfb8aa3b
            s_waitcnt vmcnt(4)
            s_barrier""")
    a.begin("k1_w1pull")
    for aa in range(4):
        for ks in range(2):
            for b in range(2):
                r = 32 + (aa * 2 + ks) * 4 + 2 * b
                a.I(f"ds_read_b64_tr_b16 v[{r}:{r+1}], v7 offset:{ks*4096 + b*512 + (aa>>1)*64 + (aa&1)*8}")
    a.end()
    a.I("s_waitcnt lgkmcnt(0)")
    def tile(sbase, name):
        a.begin(name)
        for aa in range(4):
            d = 64 + 4 * aa
            a.I(f"v_mfma_f32_16x16x32_bf16 v[{d}:{d+3}], v[{32+aa*8}:{35+aa*8}], v[{sbase}:{sbase+3}], 0")
            a.I(f"v_mfma_f32_16x16x32_bf16 v[{d}:{d+3}], v[{36+aa*8}:{39+aa*8}], v[{sbase+4}:{sbase+7}], v[{d}:{d+3}]")
        for p in range(8):
            d = 64 + 2 * p; t = 80 + 2 * p; o = 96 + p
            a.I(f"""v_cvt_pk_bf16_f32 v{d+1}, v{d}, v{d+1}
                    v_lshlrev_b32 v{d}, 16, v{d+1}
                    v_and_b32 v{d+1}, 0xffff0000, v{d+1}
                    v_mul_f32 v{t}, s30, v{d}
                    v_mul_f32 v{t+1}, s30, v{d+1}
                    v_exp_f32 v{t}, v{t}
                    v_exp_f32 v{t+1}, v{t+1}
                    v_add_f32 v{t}, 1.0, v{t}
                    v_add_f32 v{t+1}, 1.0, v{t+1}
                    v_rcp_f32 v{t}, v{t}
                    v_rcp_f32 v{t+1}, v{t+1}
                    v_mul_f32 v{t}, v{t}, v{d}
                    v_mul_f32 v{t+1}, v{t+1}, v{d+1}
                    v_cvt_pk_bf16_f32 v{o}, v{t}, v{t+1}""")
        a.I("""buffer_store_dwordx4 v[96:99], v6, s[16:19], s26 offen
               buffer_store_dwordx4 v[100:103], v6, s[16:19], s26 offen offset:64""")
        a.end()
    a.I("s_lshl_b32 s26, s25, 11\ns_waitcnt vmcnt(2)")
    tile(8, "k1_tile0")
    a.I(f"s_add_u32 s26, s26, {768*2048}\ns_cmp_ge_u32 s25, 27\ns_cbranch_scc1 K1_t1a\ns_waitcnt vmcnt(4)\ns_branch K1_t1b\nK1_t1a:\ns_waitcnt vmcnt(2)\nK1_t1b:")
    tile(16, "k1_tile1")
    a.I(f"s_add_u32 s26, s26, {768*2048}\ns_cmp_ge_u32 s25, 27\ns_cbranch_scc1 K1_t2done\ns_waitcnt vmcnt(4)")
    tile(24, "k1_tile2")
    a.I("""K1_t2done:
           s_barrier
           s_cmp_lg_u32 s3, 0
           s_cbranch_scc1 K1_end
           s_sub_u32 s24, s2, 32
           s_cmp_lt_u32 s24, 24
           s_cbranch_scc1 K1_w2job
           s_sub_u32 s24, s2, 64
           s_cmp_lt_u32 s24, 12
           s_cbranch_scc0 K1_end""")
    srd(a, 8, 50, 51, 4 * 192 * 2)
    a.I(f"""s_mul_i32 s25, s24, 0x5556
            s_lshr_b32 s25, s25, 16
            s_mul_i32 s26, s25, 3
            s_sub_u32 s26, s24, s26
            s_lshl_b32 s26, s26, 7
            s_lshl_b32 s25, s25, 5
            s_add_u32 s25, s25, s26
            v_lshlrev_b32 v6, 1, v4
            buffer_load_ushort v8, v6, s[8:11], s25 offen
            buffer_load_ushort v9, v6, s[8:11], s25 offen offset:384
            buffer_load_ushort v10, v6, s[8:11], s25 offen offset:768
            buffer_load_ushort v11, v6, s[8:11], s25 offen offset:1152
            s_lshl_b32 s24, s24, 7
            s_add_u32 s24, s24, {WF_BASE}
            v_lshlrev_b32 v7, 3, v4
            s_waitcnt vmcnt(0)
            v_lshl_or_b32 v8, v9, 16, v8
            v_lshl_or_b32 v9, v11, 16, v10
            buffer_store_dwordx2 v[8:9], v7, s[20:23], s24 offen
            s_endpgm""")
    a.I("K1_w2job:")
    srd(a, 8, 48, 49, 64 * 192 * 2)
    a.I(f"""s_lshr_b32 s27, s24, 1
            s_and_b32 s28, s24, 1
            s_mul_i32 s25, s27, 0x5556
            s_lshr_b32 s25, s25, 16
            s_mul_i32 s26, s25, 3
            s_sub_u32 s26, s27, s26
            s_lshl_b32 s26, s26, 7
            s_lshl_b32 s25, s25, 5
            s_add_u32 s25, s25, s26
            s_mul_i32 s28, s28, {32*384}
            s_add_u32 s25, s25, s28
            v_mul_u32_u24 v6, {8*384}, v5
            v_lshl_add_u32 v6, v4, 1, v6""")
    for i in range(8):
        a.I(f"buffer_load_ushort v{8+i}, v6, s[8:11], s25 offen offset:{384*i}")
    a.I(f"""s_lshl_b32 s24, s24, 10
            s_add_u32 s24, s24, {W2F_BASE}
            s_waitcnt vmcnt(0)
            v_lshl_or_b32 v8, v9, 16, v8
            v_lshl_or_b32 v9, v11, 16, v10
            v_lshl_or_b32 v10, v13, 16, v12
            v_lshl_or_b32 v11, v15, 16, v14
            buffer_store_dwordx4 v[8:11], v3, s[20:23], s24 offen
            K1_end:
            s_endpgm""")

L_REC = 0; L_A = 4096; L_R = 12288; L_W = 20480; L_T = 22528; L_CNT = 23552; L_FLAG = 23584; L_TP = 23616
L_STG = 32768
K2_LDS = 163840
CAPG = 128
INVALID = 0xFFFE80
ACC = 0; W2 = 64; H = 160; VF = 168; WF = 180; AW = 184; MK = 186; SEL = 188; PHI = 196; WT = 204
UT = 212; MS = 220; DA = 226; TS = 230
P_RS, P_R, P_A, P_RD, P_TR, P_H0, P_H1, C_CH, C_TB, C_W, ST, LANE = range(231, 243)
X = 244; Y = 248
T0 = 252
S_BIN, S_BASE, S_CNT, S_NH, S_I, S_M, S_A = 28, 29, 30, 31, 32, 33, 34
S_MV, S_MH, S_MT = 35, 36, 37
S_F = 38
def acc(c, t): return ACC + (c * 4 + t) * 4
def w2(u, ks): return W2 + (u * 2 + ks) * 4

def dma_half(a, tag_uses=()):
    a.I(f"ds_read_b32 v{DA}, v{P_RD}", rd=["@rec"])
    a.I(f"ds_read_b32 v{DA+1}, v{P_RD} offset:32", rd=["@rec"])
    for o in range(2):
        a.I(f"""v_lshrrev_b32 v{DA+2+o}, 2, v{DA+o}
                v_and_or_b32 v{DA+o}, v{DA+o}, s{S_MV}, v{C_CH}
                v_and_or_b32 v{DA+2+o}, v{DA+2+o}, s{S_MH}, v{C_CH}""")
    a.I(f"v_add_u32 v{P_RD}, 64, v{P_RD}")
    for o in range(2):
        for q in range(4):
            a.I(f"s_add_u32 m0, s{S_M}, {q*2048 + o*1024 - 128*q}")
            if q == 0: a.I(f"buffer_load_dwordx4 v{DA+2+o}, s[12:15], 0 offen lds", rd=list(tag_uses))
            else: a.I(f"buffer_load_dwordx4 v{DA+o}, s[8:11], 0 offen offset:{128*q} lds", rd=list(tag_uses))

def half_compute(a):
    done = []
    def stg(text):
        tok = f"done:{len(done)}"; done.append(tok)
        a.I(text, rd=["@stg"], wr=[tok])
    stg(f"ds_read_b128 v[{H}:{H+3}], v{P_H0}")
    stg(f"ds_read_b128 v[{H+4}:{H+7}], v{P_H1}")
    a.I(f"ds_read_b64 v[{AW}:{AW+1}], v{P_A}", rd=["@a"])
    a.I(f"ds_read_b32 v{TS}, v{P_RS}", rd=["@rec"])
    units = [(t, p) for t in range(4) for p in (1, 0, 2)]
    def wread(n):
        t, p = units[n]; b = WF + 2 * (n & 1)
        a.I(f"ds_read_b64 v[{b}:{b+1}], v{C_W} offset:{(t*3+p)*128}", rd=["@w"])
    def vread(t):
        for j in range(3):
            b = VF + ((t & 1) * 3 + j) * 2
            stg(f"ds_read_b64_tr_b16 v[{b}:{b+1}], v{P_TR} offset:{(j+1)*2048}")
        a.I(f"v_xor_b32 v{P_TR}, {hex((32, 96, 32, 96 | 0x2000)[t])}, v{P_TR}")
    def front(n):
        t, p = units[n]; u = t * 3 + p; ph = PHI + 4 * (n & 1); wt = WT + 4 * (n & 1); wf = WF + 2 * (n & 1)
        a.I(f"""v_mfma_f32_16x16x32_bf16 v[{ph}:{ph+3}], v[{H}:{H+3}], v[{w2(u,0)}:{w2(u,0)+3}], 0
                v_mfma_f32_4x4x4_16b_bf16 v[{wt}:{wt+3}], v[{AW}:{AW+1}], v[{wf}:{wf+1}], 0
                v_mfma_f32_16x16x32_bf16 v[{ph}:{ph+3}], v[{H+4}:{H+7}], v[{w2(u,1)}:{w2(u,1)+3}], v[{ph}:{ph+3}]""")
    msn = [0]
    def seg(c, t, ms, s):
        a.I(f"v_mfma_f32_16x16x16_bf16 v[{acc(c,t)}:{acc(c,t)+3}], v[{ms}:{ms+1}], v[{SEL+2*s}:{SEL+2*s+1}], v[{acc(c,t)}:{acc(c,t)+3}]")
    def back(n):
        t, p = units[n]; ph = PHI + 4 * (n & 1); wt = WT + 4 * (n & 1)
        for r in range(4): a.I(f"v_mul_f32 v{ph+r}, v{ph+r}, v{wt+r}")
        if p != 1:
            ms = MS + 2 * (msn[0] % 3); msn[0] += 1
            a.I(f"v_cvt_pk_bf16_f32 v{ms}, v{ph}, v{ph+1}\nv_cvt_pk_bf16_f32 v{ms+1}, v{ph+2}, v{ph+3}")
            if p == 0: seg(0, t, ms, 0)
            else:
                for j in range(3): seg(1 + j, t, ms, 1 + j)
        else:
            for j in range(3):
                vb = VF + ((t & 1) * 3 + j) * 2; ut = UT + 4 * (j & 1)
                ms = MS + 2 * (msn[0] % 3); msn[0] += 1
                a.I(f"""v_lshlrev_b32 v{ut}, 16, v{vb}
                        v_and_b32 v{ut+1}, 0xffff0000, v{vb}
                        v_lshlrev_b32 v{ut+2}, 16, v{vb+1}
                        v_and_b32 v{ut+3}, 0xffff0000, v{vb+1}""")
                for r in range(4): a.I(f"v_mul_f32 v{ut+r}, v{ut+r}, v{ph+r}")
                a.I(f"v_cvt_pk_bf16_f32 v{ms}, v{ut}, v{ut+1}\nv_cvt_pk_bf16_f32 v{ms+1}, v{ut+2}, v{ut+3}")
                seg(1 + j, t, ms, 0)
    wread(0); vread(0)
    a.I(f"v_and_or_b32 v{TS}, v{TS}, s{S_MT}, v{C_TB}")
    a.I(f"ds_read_b64_tr_b16 v[{MK}:{MK+1}], v{TS}", rd=["@tbl"])
    for j in range(3):
        a.I(f"ds_read_b64 v[{SEL+2+2*j}:{SEL+3+2*j}], v{P_R} offset:{j*2048}", rd=["@r"])
    wread(1)
    a.I(f"""v_xor_b32 v{P_H0}, 0x2000, v{P_H0}
            v_xor_b32 v{P_H1}, 0x2000, v{P_H1}
            v_add_u32 v{P_A}, 0x80, v{P_A}
            v_add_u32 v{P_RS}, 64, v{P_RS}
            v_add_u32 v{P_R}, 32, v{P_R}""")
    front(0)
    a.I(f"v_and_b32 v{SEL}, 0x3f803f80, v{MK}\nv_and_b32 v{SEL+1}, 0x3f803f80, v{MK+1}")
    for j in range(3):
        a.I(f"v_and_b32 v{SEL+2+2*j}, v{SEL+2+2*j}, v{MK}\nv_and_b32 v{SEL+3+2*j}, v{SEL+3+2*j}, v{MK+1}")
    vread(1)
    split = 6
    for n in range(12):
        if n == split: yield done
        if n + 1 < 12: front(n + 1)
        if n + 2 < 12: wread(n + 2)
        back(n)
        if n in (0, 3): vread(n // 3 + 2)


def geometry(a, rec, pp, rnd):
    t = 160
    HI = "0xffff0000"
    xs, ys, zs, xd, yd, zd, sh, ad, q0, q1, d, ri, fc = range(t, t + 13)
    k0 = t + 14
    dp = t + 18
    o = t + 20
    a.I(f"""v_and_b32 v{ad}, 0x7f, v{rec}
            v_lshlrev_b32 v{sh}, 4, v{ad}
            v_mul_u32_u24 v{ad}, 6, v{ad}
            v_and_b32 v{ad}, -4, v{ad}
            v_add_u32 v{ad}, {L_TP}, v{ad}""")
    a.I(f"ds_read2_b32 v[{dp}:{dp+1}], v{ad} offset0:0 offset1:1", rd=["@tp"])
    a.I(f"""v_alignbit_b32 v{dp}, v{dp+1}, v{dp}, v{sh}
            v_lshrrev_b32 v{dp+1}, v{sh}, v{dp+1}
            v_lshlrev_b32 v{xd}, 16, v{dp}
            v_and_b32 v{yd}, {HI}, v{dp}
            v_lshlrev_b32 v{zd}, 16, v{dp+1}
            v_lshrrev_b32 v{q0}, 5, v{rec}
            v_and_b32 v{q0}, 16, v{q0}
            v_alignbit_b32 v{pp}, v{pp+1}, v{pp}, v{q0}
            v_lshrrev_b32 v{pp+1}, v{q0}, v{pp+1}
            v_lshlrev_b32 v{xs}, 16, v{pp}
            v_and_b32 v{ys}, {HI}, v{pp}
            v_lshlrev_b32 v{zs}, 16, v{pp+1}
            v_sub_f32 v{xs}, v{xs}, v{xd}
            v_sub_f32 v{ys}, v{ys}, v{yd}
            v_sub_f32 v{zs}, v{zs}, v{zd}
            v_cvt_pk_bf16_f32 v{ys}, v{xs}, v{ys}
            v_cvt_pk_bf16_f32 v{zs}, v{zs}, v{zs}
            v_lshlrev_b32 v{xs}, 16, v{ys}
            v_and_b32 v{ys}, {HI}, v{ys}
            v_and_b32 v{zs}, {HI}, v{zs}
            v_mul_f32 v{xd}, v{xs}, v{xs}
            v_mul_f32 v{yd}, v{ys}, v{ys}
            v_mul_f32 v{zd}, v{zs}, v{zs}
            v_cvt_pk_bf16_f32 v{yd}, v{xd}, v{yd}
            v_cvt_pk_bf16_f32 v{zd}, v{zd}, v{zd}
            v_lshlrev_b32 v{xd}, 16, v{yd}
            v_and_b32 v{yd}, {HI}, v{yd}
            v_and_b32 v{zd}, {HI}, v{zd}
            v_add_f32 v{xd}, v{xd}, v{yd}
            v_add_f32 v{xd}, v{xd}, v{zd}
            v_cvt_pk_bf16_f32 v{xd}, v{xd}, v{xd}
            v_and_b32 v{xd}, {HI}, v{xd}
            v_add_f32 v{xd}, 0x322bcc77, v{xd}
            v_cvt_pk_bf16_f32 v{xd}, v{xd}, v{xd}
            v_and_b32 v{xd}, {HI}, v{xd}
            v_sqrt_f32 v{xd}, v{xd}
            v_cvt_pk_bf16_f32 v{xd}, v{xd}, v{xd}
            v_and_b32 v{d}, {HI}, v{xd}
            v_rcp_f32 v{ri}, v{d}
            v_mul_f32 v{fc}, 0x40490fdb, v{d}
            v_cvt_pk_bf16_f32 v{fc}, v{fc}, v{fc}
            v_and_b32 v{fc}, {HI}, v{fc}
            v_mul_f32 v{fc}, 0x3e4ccccd, v{fc}
            v_cvt_pk_bf16_f32 v{fc}, v{fc}, v{fc}
            v_and_b32 v{fc}, {HI}, v{fc}
            v_mul_f32 v{fc}, 0.15915494, v{fc}
            v_cos_f32 v{fc}, v{fc}
            v_cvt_pk_bf16_f32 v{fc}, v{fc}, v{fc}
            v_and_b32 v{fc}, {HI}, v{fc}
            v_add_f32 v{fc}, 1.0, v{fc}
            v_cvt_pk_bf16_f32 v{fc}, v{fc}, v{fc}
            v_and_b32 v{fc}, {HI}, v{fc}
            v_mul_f32 v{fc}, 0.5, v{fc}
            v_mul_f32 v{q1}, 0, v{d}
            v_cmp_gt_f32 vcc, 0x40a00000, v{d}
            v_cndmask_b32 v{fc}, v{q1}, v{fc}, vcc
            v_mul_f32 v{xs}, v{xs}, v{ri}
            v_mul_f32 v{ys}, v{ys}, v{ri}
            v_mul_f32 v{zs}, v{zs}, v{ri}
            v_cvt_pk_bf16_f32 v{o+2}, v{xs}, v{ys}
            v_cvt_pk_bf16_f32 v{o+3}, v{zs}, v{zs}""")
    for k in range(4): a.I(f"v_mul_f32 v{k0+k}, s{S_F+k}, v{d}")
    def rnd2(x):
        a.I(f"""v_cvt_pk_bf16_f32 v{x+1}, v{x}, v{x+1}
                v_lshlrev_b32 v{x}, 16, v{x+1}
                v_and_b32 v{x+1}, {HI}, v{x+1}""")
    rnd2(k0); rnd2(k0 + 2)
    for k in range(4):
        a.I(f"""v_mul_f32 v{k0+k}, 0.15915494, v{k0+k}
                v_fract_f32 v{k0+k}, v{k0+k}
                v_sin_f32 v{k0+k}, v{k0+k}""")
    rnd2(k0); rnd2(k0 + 2)
    for k in range(4): a.I(f"v_mul_f32 v{k0+k}, v{k0+k}, v{ri}")
    rnd2(k0); rnd2(k0 + 2)
    for k in range(4): a.I(f"v_mul_f32 v{k0+k}, v{k0+k}, v{fc}")
    a.I(f"""v_cvt_pk_bf16_f32 v{o}, v{k0}, v{k0+1}
            v_cvt_pk_bf16_f32 v{o+1}, v{k0+2}, v{k0+3}
            s_lshl_b32 s48, s3, 10
            v_lshl_add_u32 v{xd}, v{LANE}, 3, s48
            s_lshl_b32 s48, s3, 8
            v_lshl_add_u32 v{yd}, v{LANE}, 1, s48
            s_sub_u32 s48, s{S_CNT}, {64*rnd}
            v_cmp_gt_u32 vcc, s48, v{LANE}
            s_mov_b64 exec, vcc""")
    a.I(f"ds_write_b64 v{xd}, v[{o}:{o+1}] offset:{L_A + 512*rnd}", wr=["@a"])
    a.I(f"""ds_write_b16 v{yd}, v{o+2} offset:{L_R + 128*rnd}
            ds_write_b16_d16_hi v{yd}, v{o+2} offset:{L_R + 2048 + 128*rnd}
            ds_write_b16 v{yd}, v{o+3} offset:{L_R + 4096 + 128*rnd}""", wr=["@r"])
    a.I("s_mov_b64 exec, -1")

def row_addr(a, t0):
    a.I(f"""v_and_b32 v{t0}, 15, v{LANE}
            v_lshrrev_b32 v{t0+1}, 5, v{LANE}
            v_xor_b32 v{t0+1}, v{t0+1}, v{t0}
            v_lshlrev_b32 v{t0+1}, 4, v{t0+1}
            v_lshl_add_u32 v{t0+1}, v{t0}, 9, v{t0+1}
            v_bfe_u32 v{t0+2}, v{LANE}, 4, 1
            v_lshl_add_u32 v{t0+1}, v{t0+2}, 3, v{t0+1}
            v_add_u32 v{t0+4}, s{S_A}, v{t0+1}""")
    for c in range(2):
        for t in range(4):
            if c or t: a.I(f"v_xor_b32 v{t0+4+c*4+t}, {(8*c + 2*t)*16}, v{t0+4}")

def load_cands(a, first):
    t = 196
    a.I(f"""v_lshrrev_b32 v{t}, 1, v{LANE}
            s_lshl_b32 s48, s3, 5
            v_add_u32 v{t}, s48, v{t}
            v_and_b32 v{t+1}, 1, v{LANE}
            v_lshlrev_b32 v{t+1}, 4, v{t+1}
            v_lshl_add_u32 v{t+2}, v{t}, 13, v{t+1}
            v_mul_u32_u24 v{t+3}, {O_STRIDE}, v{t}
            v_add_u32 v{t+3}, v{t+3}, v{t+1}
            s_lshl_b32 s48, s{S_BIN}, 5
            s_mov_b32 s49, {O_BASE}""")
    if not first:
        a.I(f"""v_bfe_u32 v{t}, v{ST}, 8, 15
                v_lshl_add_u32 v{t+3}, v{t}, 5, v{t+3}""")
    if first: a.I("s_waitcnt lgkmcnt(0)"); a.forget(); srd(a, 16, 46, 47, WS_BYTES)
    a.I(f"""buffer_load_dwordx4 v[{X}:{X+3}], v{t+2}, s[16:19], s48 offen
            buffer_load_dwordx4 v[{Y}:{Y+3}], v{t+3}, s[16:19], s49 offen""")

def lds_reset(a):
    t = 200
    a.I(f"""v_mov_b32 v{t}, {INVALID}
            v_mov_b32 v{t+1}, {INVALID}
            s_lshl_b32 s48, s3, 9
            v_lshl_add_u32 v{t+2}, v{LANE}, 3, s48
            ds_write_b64 v{t+2}, v[{t}:{t+1}]
            v_mov_b32 v{t+4}, 0
            v_and_b32 v{t+3}, 15, v{LANE}
            v_lshlrev_b32 v{t+3}, 2, v{t+3}
            ds_write_b32 v{t+3}, v{t+4} offset:{L_CNT}""")

def gen_k2(a):
    a.I(f"""s_load_dwordx4 s[4:7], s[0:1], 0
           s_load_dwordx2 s[42:43], s[0:1], 32
           s_load_dwordx2 s[44:45], s[0:1], 64
           s_load_dwordx2 s[46:47], s[0:1], 80
           s_cmp_ge_u32 s2, 256
           s_cbranch_scc1 K2_end
           v_lshrrev_b32 v1, 6, v0
           v_and_b32 v{LANE}, 63, v0
           v_readfirstlane_b32 s3, v1
           s_and_b32 s{S_BIN}, s2, 7
           s_lshl_b32 s{S_BIN}, s{S_BIN}, 5
           s_lshr_b32 s48, s2, 3
           s_add_u32 s{S_BIN}, s{S_BIN}, s48
           s_mul_i32 s{S_BASE}, s{S_BIN}, {TILE}""")
    load_cands(a, True)
    a.I("s_load_dwordx2 s[40:41], s[42:43], 0")
    srd(a, 8, 4, 5, N * 512)
    a.begin("k2_issue")
    a.I(f"""s_lshl_b32 s{S_A}, s3, 14
            s_add_u32 s{S_A}, s{S_A}, {L_STG}
            v_lshrrev_b32 v6, 5, v{LANE}
            v_and_b32 v7, 31, v{LANE}
            v_xor_b32 v7, v7, v6
            v_lshlrev_b32 v7, 4, v7
            v_lshl_add_u32 v7, v6, 12, v7
            s_add_u32 s52, s{S_BASE}, s3
            s_lshl_b32 s52, s52, 9""")
    for i in range(6):
        a.I(f"""v_xor_b32 v{8+i}, {32*i}, v7
                s_add_u32 m0, s{S_A}, {1024*i}
                buffer_load_dwordx4 v{8+i}, s[8:11], s52 offen lds
                s_add_u32 s52, s52, 8192""", wr=[])
    a.I(f"""v_lshlrev_b32 v14, 4, v{LANE}
            s_mul_i32 s53, s3, 3072
            s_add_u32 s53, s53, {W2F_BASE}
            s_add_u32 m0, s{S_A}, 8192
            buffer_load_dwordx4 v14, s[16:19], s53 offen lds
            buffer_load_dwordx4 v14, s[16:19], s53 offen offset:1024 lds
            buffer_load_dwordx4 v14, s[16:19], s53 offen offset:2048 lds""")
    a.I(f"s_add_u32 s50, s46, {H_BASE}\ns_addc_u32 s51, s47, 0")
    srd(a, 12, 50, 51, N * 128)
    srd(a, 20, 44, 45, N * 512)
    srd(a, 24, 6, 7, N * 6)
    a.end()
    a.begin("k2_init")
    a.I(f"""v_mov_b32 v20, 0
            v_mov_b32 v21, 0
            v_mov_b32 v22, 0
            v_mov_b32 v23, 0
            v_lshlrev_b32 v18, 4, v0""")
    a.I(f"""ds_write_b128 v18, v[20:23] offset:{L_A}
            ds_write_b128 v18, v[20:23] offset:{L_R}""", wr=["@i0"])
    lds_reset(a)
    a.I(f"""v_and_b32 v24, 31, v0
            v_bfe_u32 v25, v0, 5, 2
            v_lshrrev_b32 v26, 2, v24
            v_cmp_eq_u32 vcc, v25, v26
            v_lshlrev_b32 v26, 4, v24
            v_and_b32 v26, 48, v26
            v_mov_b32 v28, 0xffff
            v_mov_b32 v29, 0
            v_lshlrev_b64 v[28:29], v26, v[28:29]
            v_cndmask_b32 v28, 0, v28, vcc
            v_cndmask_b32 v29, 0, v29, vcc
            v_and_b32 v24, 0x7f, v0
            v_lshlrev_b32 v24, 3, v24
            ds_write_b64 v24, v[28:29] offset:{L_T}""")
    a.I(f"""s_mov_b32 s{S_MV}, 0x00fffe00
            s_mov_b32 s{S_MH}, 0x003fff80
            s_movk_i32 s{S_MT}, 0xf8
            v_and_b32 v1, 15, v{LANE}
            v_lshrrev_b32 v2, 4, v{LANE}
            v_and_b32 v3, 3, v{LANE}
            v_and_b32 v5, 7, v{LANE}
            v_lshlrev_b32 v6, 1, v2
            v_xor_b32 v5, v5, v6
            v_lshlrev_b32 v{C_CH}, 4, v5
            v_lshlrev_b32 v{C_TB}, 8, v3
            v_add_u32 v{C_TB}, {L_T}, v{C_TB}
            v_lshlrev_b32 v{C_W}, 3, v1
            v_add_u32 v{C_W}, {L_W}, v{C_W}
            s_mov_b32 s55, 1
            s_cmp_gt_u32 s3, 2""")
    a.end()
    a.allow_pending = True
    a.I(f"""s_cbranch_scc1 K2_roles_done
            s_cmp_eq_u32 s3, 2
            s_cbranch_scc1 K2_role2
            s_lshl_b32 s53, s3, 10
            s_add_u32 m0, s53, {L_W}
            s_add_u32 s53, s53, {WF_BASE}
            buffer_load_dwordx4 v14, s[16:19], s53 offen lds
            v_xor_b32 v8, 192, v7
            s_add_u32 m0, s{S_A}, 6144
            s_mov_b32 exec_hi, 0
            buffer_load_dwordx4 v8, s[8:11], s52 offen lds
            s_mov_b64 exec, -1
            s_branch K2_roles_done
            K2_role2:
            v_lshlrev_b32 v8, 2, v{LANE}
            s_mul_i32 s53, s{S_BASE}, 6
            s_mov_b32 m0, {L_TP}
            s_nop 0
            buffer_load_dword v8, s[24:27], s53 offen lds
            buffer_load_dword v8, s[24:27], s53 offen offset:256 lds
            buffer_load_dword v8, s[24:27], s53 offen offset:512 lds
            K2_roles_done:""")
    a.allow_pending = False
    a.I("""s_waitcnt lgkmcnt(0)
           s_barrier""")
    a.I(f"""s_lshl_b32 s{S_F}, s40, 16
            s_and_b32 s{S_F+1}, s40, 0xffff0000
            s_lshl_b32 s{S_F+2}, s41, 16
            s_and_b32 s{S_F+3}, s41, 0xffff0000
            s_waitcnt vmcnt(9)""")
    a.forget()
    hd, hf, cn, ln, t0, t1 = 196, 197, 198, 199, 200, 201
    rk, g4, one = 202, 206, 210
    a.I("K2_pass:")
    a.I(f"""v_mov_b32_dpp v{hd}, v{X} quad_perm:[0,0,2,2] row_mask:0xf bank_mask:0xf
            v_and_b32 v{hf}, 1, v{LANE}
            v_and_b32 v{cn}, 0xffff, v{hd}
            v_lshrrev_b32 v{ln}, 16, v{hd}
            v_cmp_lt_u32 s[56:57], 7, v{cn}
            s_cmp_eq_u32 s55, 0
            s_cbranch_scc1 K2_hdr_done
            v_mul_u32_u24 v{t0}, 3, v{hf}
            v_sub_u32 v{t0}, v{cn}, v{t0}
            v_add_u32 v{t1}, 3, v{hf}
            v_med3_i32 v{t0}, v{t0}, 0, v{t1}
            v_bfm_b32 v{t0}, v{t0}, 0
            v_xor_b32 v{t1}, 1, v{hf}
            v_lshlrev_b32 v{ST}, v{t1}, v{t0}
            K2_hdr_done:""")
    def admit(base, bit0, name):
        a.begin(name)
        for i in range(4):
            a.I(f"""v_and_b32 v{rk+i}, {1 << (bit0+i)}, v{ST}
                    v_cmp_ne_u32 s[{64+2*i}:{65+2*i}], 0, v{rk+i}
                    v_lshlrev_b32 v{g4+i}, 2, v{base+i}
                    v_and_b32 v{g4+i}, 28, v{g4+i}""")
        a.I(f"v_mov_b32 v{one}, 1")
        a.end()
        for i in range(4):
            a.I(f"""s_mov_b64 exec, s[{64+2*i}:{65+2*i}]
                    ds_add_rtn_u32 v{rk+i}, v{g4+i}, v{one} offset:{L_CNT}""")
        for i in range(4):
            a.I(f"""s_mov_b64 exec, s[{64+2*i}:{65+2*i}]
                    v_cmp_gt_u32 vcc, {CAPG}, v{rk+i}
                    v_lshlrev_b32 v{rk+i}, 2, v{rk+i}
                    v_lshl_add_u32 v{rk+i}, v{g4+i}, 7, v{rk+i}
                    s_mov_b64 exec, vcc
                    ds_write_b32 v{rk+i}, v{base+i} offset:{L_REC}
                    v_xor_b32 v{ST}, {1 << (bit0+i)}, v{ST}""")
        a.I("s_mov_b64 exec, -1")
    admit(X, 0, "k2_admit")
    a.I(f"""s_mov_b64 s[58:59], 0
            s_cmp_eq_u64 s[56:57], 0
            s_cbranch_scc1 K2_noovf""")
    a.I(f"""v_bfe_u32 v{t0}, v{ST}, 8, 15
            v_lshlrev_b32 v{t0}, 3, v{t0}
            v_lshl_add_u32 v{t0}, v{hf}, 2, v{t0}
            v_cmp_le_i32 vcc, 0, v{ST}
            s_and_b64 s[58:59], vcc, s[56:57]""")
    for i in range(4):
        a.I(f"""v_add_u32 v{t1}, {i}, v{t0}
                v_cmp_lt_u32 vcc, v{t1}, v{ln}
                s_and_b64 s[60:61], vcc, s[58:59]
                v_lshrrev_b32 v{t1}, 24, v{Y+i}
                v_cmp_eq_u32 vcc, s{S_BIN}, v{t1}
                s_and_b64 exec, vcc, s[60:61]
                v_or_b32 v{ST}, {16 << i}, v{ST}
                s_mov_b64 exec, -1""")
    a.I(f"v_or_b32 v{ST}, 0x80000000, v{ST}")
    admit(Y, 4, "k2_admit_ovf")
    a.I(f"""v_add_u32 v{t0}, 8, v{t0}
            v_cmp_lt_u32 vcc, v{t0}, v{ln}
            s_and_b64 s[58:59], vcc, s[56:57]
            v_and_b32 v{t1}, 0xf0, v{ST}
            v_cmp_eq_u32 vcc, 0, v{t1}
            s_and_b64 exec, vcc, s[58:59]
            v_add_u32 v{ST}, 0x80000100, v{ST}
            s_mov_b64 exec, -1
            v_cmp_le_i32 vcc, 0, v{ST}
            s_and_b64 s[58:59], vcc, s[56:57]
            K2_noovf:
            v_and_b32 v{t1}, 0xff, v{ST}
            v_cmp_ne_u32 vcc, 0, v{t1}
            s_or_b64 s[58:59], s[58:59], vcc
            s_cbranch_scc0 K2_nomore
            v_mov_b32 v{t0}, 0
            v_mov_b32 v{t1}, 1
            ds_write_b32 v{t0}, v{t1} offset:{L_FLAG}
            K2_nomore:
            s_waitcnt vmcnt(0) lgkmcnt(0)
            s_barrier""")
    a.forget()
    PP = 192
    u = 196
    a.begin("k2_post")
    a.I(f"""s_lshl_b32 s48, s3, 2
            v_mov_b32 v{u}, s48
            v_mov_b32 v{u+13}, 0
            s_lshl_b32 s49, s3, 9
            v_lshl_add_u32 v{u+1}, v{LANE}, 2, s49""")
    a.I(f"""ds_read_b32 v{T0}, v{u+1} offset:{L_REC}
            ds_read_b32 v{T0+1}, v{u+1} offset:{L_REC + 256}
            ds_read_b32 v{u+2}, v{u} offset:{L_CNT}
            ds_read_b32 v{u+3}, v{u+13} offset:{L_FLAG}""", rd=["@rec"])
    a.I(f"""v_bfe_u32 v{u+11}, v{T0}, 9, 15
            v_mul_u32_u24 v{u+11}, 6, v{u+11}
            v_and_b32 v{u+11}, -4, v{u+11}
            buffer_load_dwordx2 v[{PP}:{PP+1}], v{u+11}, s[24:27], 0 offen
            v_bfe_u32 v{u+12}, v{T0+1}, 9, 15
            v_mul_u32_u24 v{u+12}, 6, v{u+12}
            v_and_b32 v{u+12}, -4, v{u+12}
            buffer_load_dwordx2 v[{PP+2}:{PP+3}], v{u+12}, s[24:27], 0 offen
            v_lshrrev_b32 v{u+5}, 3, v{LANE}
            v_lshl_add_u32 v{P_RD}, v{u+5}, 2, s49
            v_and_b32 v{u+4}, 15, v{LANE}
            v_lshrrev_b32 v{u+5}, 4, v{LANE}
            v_and_b32 v{u+6}, 3, v{LANE}
            v_lshrrev_b32 v{u+7}, 2, v{u+4}
            v_lshl_add_u32 v{u+8}, v{u+5}, 2, v{u+7}
            v_lshl_add_u32 v{P_RS}, v{u+8}, 2, s49
            v_lshl_add_u32 v{u+9}, v{u+5}, 2, v{u+6}
            s_lshl_b32 s50, s3, 10
            s_add_u32 s50, s50, {L_A}
            v_lshl_add_u32 v{P_A}, v{u+9}, 3, s50
            s_lshl_b32 s51, s3, 8
            s_add_u32 s51, s51, {L_R}
            v_lshl_add_u32 v{P_R}, v{u+5}, 3, s51
            v_bfe_u32 v{u+10}, v{u+8}, 1, 2
            v_lshlrev_b32 v{u+10}, 5, v{u+10}
            v_lshl_add_u32 v{u+10}, v{u+8}, 7, v{u+10}
            v_lshl_add_u32 v{u+10}, v{u+6}, 3, v{u+10}
            v_add_u32 v{P_TR}, s{S_A}, v{u+10}
            v_bfe_u32 v{u+14}, v{u+4}, 1, 2
            v_lshlrev_b32 v{u+14}, 1, v{u+14}
            v_xor_b32 v{u+14}, v{u+14}, v{u+5}
            v_lshlrev_b32 v{u+14}, 4, v{u+14}
            v_lshl_add_u32 v{u+14}, v{u+4}, 7, v{u+14}
            v_add_u32 v{P_H0}, s{S_A}, v{u+14}
            v_xor_b32 v{P_H1}, 64, v{P_H0}
            v_readfirstlane_b32 s{S_CNT}, v{u+2}
            v_readfirstlane_b32 s54, v{u+3}
            s_min_u32 s{S_CNT}, s{S_CNT}, {CAPG}
            s_add_u32 s{S_NH}, s{S_CNT}, 15
            s_lshr_b32 s{S_NH}, s{S_NH}, 4
            s_mov_b32 s{S_M}, s{S_A}
            s_cmp_eq_u32 s55, 0""")
    a.end()
    a.allow_pending = True
    a.I("s_cbranch_scc1 K2_later_pass")
    a.begin("k2_pull")
    row_addr(a, 212)
    for c in range(2):
        for t in range(4):
            for hi in range(2):
                r = 160 + ((c + 2 * hi) * 4 + t) * 2
                a.I(f"ds_read_b64 v[{r}:{r+1}], v{216+c*4+t} offset:{256*hi}", rd=["@res"])
    a.I(f"""v_lshlrev_b32 v224, 4, v{LANE}
            v_add_u32 v224, {L_STG + 8192}, v224
            v_add_u32 v225, 0x10000, v224
            s_cmp_eq_u32 s{S_NH}, 0""")
    a.end()
    a.I("s_waitcnt lgkmcnt(0)\ns_cbranch_scc1 K2_noH0")
    a.begin("k2_h0")
    dma_half(a)
    a.I(f"s_xor_b32 s{S_M}, s{S_M}, 0x2000")
    a.end()
    a.I("K2_noH0:")
    a.begin("k2_w2pull")
    for f in range(24):
        w, k = divmod(f, 3)
        off = w * 16384 + k * 1024
        a.I(f"ds_read_b128 v[{W2+4*f}:{W2+4*f+3}], v{224 if off < 65536 else 225} offset:{off & 0xffff}", rd=["@w2"])
    for c in range(4):
        for t in range(4):
            r = 160 + (c * 4 + t) * 2; d = acc(c, t)
            a.I(f"""v_lshlrev_b32 v{d}, 16, v{r}
                    v_and_b32 v{d+1}, 0xffff0000, v{r}
                    v_lshlrev_b32 v{d+2}, 16, v{r+1}
                    v_and_b32 v{d+3}, 0xffff0000, v{r+1}""")
    a.end()
    a.I(f"""s_waitcnt lgkmcnt(0)
            s_barrier
            s_branch K2_h1
            K2_later_pass:
            s_cmp_eq_u32 s{S_NH}, 0
            s_cbranch_scc1 K2_h1""")
    a.begin("k2_h0b")
    dma_half(a)
    a.I(f"s_xor_b32 s{S_M}, s{S_M}, 0x2000")
    a.end()
    a.I(f"""K2_h1:
            s_cmp_eq_u32 s{S_NH}, 0
            s_cbranch_scc1 K2_loop_done
            s_cmp_eq_u32 s{S_NH}, 1
            s_cbranch_scc1 K2_noH1""")
    a.begin("k2_h1")
    dma_half(a)
    a.I(f"s_xor_b32 s{S_M}, s{S_M}, 0x2000")
    a.end()
    a.I(f"""s_waitcnt vmcnt(16)
            s_branch K2_geo
            K2_noH1:
            s_waitcnt vmcnt(8)
            K2_geo:""")
    a.forget()
    a.begin("k2_geo0")
    geometry(a, T0, PP, 0)
    a.I(f"s_cmp_le_u32 s{S_CNT}, 64")
    a.end()
    a.I("s_cbranch_scc1 K2_geo_done")
    a.begin("k2_geo1")
    geometry(a, T0 + 1, PP + 2, 1)
    a.end()
    a.I(f"""K2_geo_done:
            s_mov_b32 s{S_I}, 1
            K2_loop:
            s_cmp_lt_u32 s{S_I}, s{S_NH}
            s_cbranch_scc1 K2_w8
            s_waitcnt vmcnt(0)
            s_branch K2_wdone
            K2_w8:
            s_waitcnt vmcnt(8)
            K2_wdone:""")
    a.forget()
    a.begin("k2_halfA")
    g = half_compute(a)
    next(g)
    a.I(f"""s_add_u32 s{S_I}, s{S_I}, 1
            s_cmp_lt_u32 s{S_I}, s{S_NH}""")
    a.end()
    a.I("s_waitcnt lgkmcnt(0)\ns_cbranch_scc0 K2_nodma")
    a.begin("k2_dma")
    dma_half(a)
    a.I(f"s_xor_b32 s{S_M}, s{S_M}, 0x2000")
    a.end()
    a.I("K2_nodma:")
    a.begin("k2_halfB")
    for _ in g: pass
    a.I(f"s_cmp_le_u32 s{S_I}, s{S_NH}")
    a.end()
    a.I(f"""s_cbranch_scc1 K2_loop
            K2_loop_done:
            s_cmp_lg_u32 s54, 0
            s_cbranch_scc1 K2_again
            s_waitcnt vmcnt(0) lgkmcnt(0)""")
    a.allow_pending = False
    a.forget()
    a.begin("k2_epi")
    row_addr(a, 212)
    for c in range(4):
        for t in range(4):
            d = acc(c, t); r = 160 + (c * 4 + t) * 2
            a.I(f"v_cvt_pk_bf16_f32 v{r}, v{d}, v{d+1}\nv_cvt_pk_bf16_f32 v{r+1}, v{d+2}, v{d+3}")
            a.I(f"ds_write_b64 v{216+(c&1)*4+t}, v[{r}:{r+1}] offset:{256*(c>>1)}", wr=["@out"])
    a.I(f"""v_lshrrev_b32 v64, 5, v{LANE}
            v_and_b32 v65, 31, v{LANE}
            v_xor_b32 v66, v65, v64
            v_lshlrev_b32 v66, 4, v66
            v_lshl_add_u32 v66, v64, 9, v66
            v_add_u32 v66, s{S_A}, v66
            v_lshlrev_b32 v65, 4, v65
            v_lshl_add_u32 v65, v64, 12, v65
            s_add_u32 s52, s{S_BASE}, s3
            s_lshl_b32 s52, s52, 9""")
    for i in range(7):
        a.I(f"v_xor_b32 v{68+i}, {32*i}, v66")
        a.I(f"ds_read_b128 v[{80+4*i}:{83+4*i}], v{68+i} offset:{1024*i}", rd=["@out"])
    for i in range(6):
        a.I(f"""buffer_store_dwordx4 v[{80+4*i}:{83+4*i}], v65, s[20:23], s52 offen
                s_add_u32 s52, s52, 8192""")
    a.I("s_cmp_gt_u32 s3, 1")
    a.end()
    a.I(f"""s_waitcnt lgkmcnt(0)
            s_cbranch_scc1 K2_end
            s_mov_b32 exec_hi, 0
            buffer_store_dwordx4 v[104:107], v65, s[20:23], s52 offen
            K2_end:
            s_endpgm""")
    a.forget()
    a.I("""K2_again:
           s_waitcnt vmcnt(0) lgkmcnt(0)
           s_barrier""")
    lds_reset(a)
    load_cands(a, False)
    a.I("""s_mov_b32 s55, 0
           s_waitcnt vmcnt(0) lgkmcnt(0)
           s_barrier
           s_branch K2_pass""")

KD = """.section .rodata,"a"
.p2align 6
.amdhsa_kernel {name}
  .amdhsa_next_free_vgpr {vgpr}
  .amdhsa_next_free_sgpr 102
  .amdhsa_accum_offset {acc}
  .amdhsa_group_segment_fixed_size 0
  .amdhsa_kernarg_size 88
  .amdhsa_user_sgpr_count 2
  .amdhsa_user_sgpr_kernarg_segment_ptr 1
  .amdhsa_system_sgpr_workgroup_id_x 1
  .amdhsa_float_denorm_mode_32 3
.end_amdhsa_kernel
"""

def build(verbose=False):
    ref = open("gather_scatter__molecular_angular_painn__graph.s.ref").read()
    head = [l for l in ref.split("\n") if l.startswith(";") and "@launch" not in l]
    out = "\n".join(head) + "\n"
    out += f"; @launch kernel=painn_bin_kernel grid=(256,1,1) block=(1024,1,1) lds={K1_LDS}\n"
    out += f"; @launch kernel=painn_msg_kernel grid=(256,1,1) block=(512,1,1) lds={K2_LDS}\n"
    out += '.amdgcn_target "amdgcn-amd-amdhsa--gfx950"\n.text\n'
    for name, fn in (("painn_bin_kernel", gen_k1), ("painn_msg_kernel", gen_k2)):
        a = Asm(); fn(a); a.fix_hazards()
        if verbose:
            for r in a.report: print("  region %-14s n=%4d est_cycles=%d" % r, file=sys.stderr)
            print(name, "instrs", len(a.items), "nops", sum(1 for o in a.items if o.kind == "nop"), file=sys.stderr)
        out += f".globl {name}\n.p2align 8\n.type {name},@function\n{name}:\n" + a.text()
    out += KD.format(name="painn_bin_kernel", vgpr=128, acc=128)
    out += KD.format(name="painn_msg_kernel", vgpr=256, acc=256)
    return out

if __name__ == "__main__":
    txt = build(True)
    path = sys.argv[1] if len(sys.argv) > 1 else "k.s"
    open(path, "w").write(txt)
```
